```python
import torch

def _softmax(x, axis=-1):
    return torch.softmax(x, dim=axis)
def _gelu(x):
    return torch.nn.functional.gelu(x, approximate="tanh")
def _silu(x):
    return torch.nn.functional.silu(x)
def _sigmoid(x):
    return torch.sigmoid(x)
def _layernorm(x, axis=-1, eps=1e-5):
    m = x.mean(dim=axis, keepdim=True)
    v = x.var(dim=axis, keepdim=True, unbiased=False)
    return (x - m) / torch.sqrt(v + eps)
def _scatter_add(tgt, idx, src, axis=0):
    return tgt.clone().index_add_(axis, idx, src)
def _segment_sum(src, seg, n):
    out = torch.zeros((n,) + src.shape[1:], dtype=src.dtype)
    return out.index_add_(0, seg, src)
def _pad(x, pw):
    flat = tuple(v for pair in reversed(pw) for v in pair)
    return torch.nn.functional.pad(x, flat)

kernel_name = 'recurrent_scan__compressed_kv_cla__dense_activation_relu__prompt'

def setup_inputs():

    _w = (lambda a: (lambda t: t.to(torch.bfloat16) if t.is_floating_point() else t)(torch.as_tensor(a)))
    def _A_setup():
        B, H, Sq, Sk, D, M = 1, 32, 2048, 2048, 128, 512
        Dc = 4 * D
        return {
            "x": _w((lambda *s: torch.randn(*s, dtype=torch.bfloat16) * 0.05)(B, Sq, M)),
            "c_kv": _w((lambda *s: torch.randn(*s, dtype=torch.bfloat16) * 0.2)(B, Sk, Dc)),
            "w_q": _w((lambda *s: torch.randn(*s, dtype=torch.bfloat16) * 3.2)(M, H, D) * (M ** -0.5)),
            "w_uk": _w((lambda *s: torch.randn(*s, dtype=torch.bfloat16) * 3.2)(Dc, H, D) * (Dc ** -0.5)),
            "w_uv": _w((lambda *s: torch.randn(*s, dtype=torch.bfloat16) * 0.2)(Dc, H, D) * (Dc ** -0.5)),
            "w_o": _w((lambda *s: torch.randn(*s, dtype=torch.bfloat16) * 0.2)(H, D, M) * ((H * D) ** -0.5)),
        }
    _A_in = _A_setup()

    def _B_setup():
        B, S, D, Dff = 1, 2048, 512, 1376
        return {
            "x": _w((lambda *s: torch.randn(*s, dtype=torch.bfloat16) * 0.05)(B, S, D)),
            "w1": _w((lambda *s: torch.randn(*s, dtype=torch.bfloat16) * 0.1)(D, Dff)),
            "w2": _w((lambda *s: torch.randn(*s, dtype=torch.bfloat16) * 0.1)(Dff, D)),
        }
    _B_in = _B_setup()

    return {
        "A_x": _A_in["x"],
        "A_c_kv": _A_in["c_kv"],
        "A_w_q": _A_in["w_q"],
        "A_w_uk": _A_in["w_uk"],
        "A_w_uv": _A_in["w_uv"],
        "A_w_o": _A_in["w_o"],
        "B_x": _B_in["x"],
        "B_w1": _B_in["w1"],
        "B_w2": _B_in["w2"],
    }

def reference(A_x, A_c_kv, A_w_q, A_w_uk, A_w_uv, A_w_o, B_x, B_w1, B_w2):
    def _A_ref(x, c_kv, w_q, w_uk, w_uv, w_o):
        B, Sq, M = x.shape[0], x.shape[1], x.shape[2]
        Sk = c_kv.shape[1]
        H, D = w_q.shape[1], w_q.shape[2]
        q = torch.einsum("bqm,mhd->bhqd", x, w_q)
        k = torch.einsum("bkc,chd->bhkd", c_kv, w_uk)
        v = torch.einsum("bkc,chd->bhkd", c_kv, w_uv)
        scores = torch.einsum("bhqd,bhkd->bhqk", q, k) * (D ** -0.5)
        off = Sk - Sq
        qi = torch.arange(Sq)[:, None]
        kj = torch.arange(Sk)[None, :]
        cmask = kj <= (qi + off)
        scores = torch.where(cmask[None, None], scores, -1e9)
        p = _softmax(scores, axis=-1)
        ctx = torch.einsum("bhqk,bhkd->bhqd", p, v)
        return torch.einsum("bhqd,hdm->bqm", ctx, w_o)

    def _B_ref(x, w1, w2):
        h = torch.einsum("bsd,df->bsf", x, w1)
        zero = torch.zeros_like(h)
        h = torch.maximum(h, zero)
        return torch.einsum("bsf,fd->bsd", h, w2)

    x = A_x
    xn = _layernorm(x, axis=-1)
    s = _A_ref(xn, A_c_kv, A_w_q, A_w_uk, A_w_uv, A_w_o)
    g = _silu(_B_ref(xn, B_w1, B_w2))
    return x + s * g
```

```python
from fw import *

KA_X, KA_CKV, KA_WQ, KA_WUK, KA_WUV, KA_WO, KA_BX, KA_W1, KA_W2, KA_OUT, KA_DBG, KA_WS = [8 * i for i in range(12)]

WS_XN = 0x0
WS_Q = 0x0200000
WS_K = 0x1200000
WS_VT = 0x2200000
WS_H = 0x3200000
H_LD = 1408
WS_CTX = 0x3800000
WS_PART = 0x4800000
WS_CKV = 0x5800000
SZ_XN = 2048 * 512 * 2
SZ_QKV = 32 * 2048 * 128 * 2
SZ_H = 2048 * H_LD * 2
SZ_CTX = 2048 * 4096 * 2
SZ_PART = 4 * 2048 * 512 * 4

def srd(k, dst, ptr, nbytes, off=0):
    if off:
        k.I("s_add_u32 s%d, s%d, 0x%x" % (dst, ptr, off))
        k.I("s_addc_u32 s%d, s%d, 0" % (dst + 1, ptr + 1))
        k.I("s_and_b32 s%d, s%d, 0xffff" % (dst + 1, dst + 1))
    else:
        k.I("s_mov_b32 s%d, s%d" % (dst, ptr))
        k.I("s_and_b32 s%d, s%d, 0xffff" % (dst + 1, ptr + 1))
    k.I("s_mov_b32 s%d, 0x%x" % (dst + 2, nbytes))
    k.I("s_mov_b32 s%d, 0x00020000" % (dst + 3))

def descriptor(k, lds_static=0, extra=""):
    nv = k.max_vgpr() + 1
    nv = max(nv, 8)
    acc = (nv + 3) // 4 * 4
    ns = max(k.max_sgpr() + 1, 16)
    return (".amdhsa_kernel %s\n  .amdhsa_next_free_vgpr %d\n  .amdhsa_next_free_sgpr %d\n  .amdhsa_accum_offset %d\n"
            "  .amdhsa_group_segment_fixed_size 0\n  .amdhsa_kernarg_size 96\n  .amdhsa_user_sgpr_count 2\n"
            "  .amdhsa_user_sgpr_kernarg_segment_ptr 1\n  .amdhsa_system_sgpr_workgroup_id_x 1\n%s.end_amdhsa_kernel\n"
            % (k.name, nv, ns, acc, extra))
```

```python
import re

TRANS = ("v_exp_f32", "v_log_f32", "v_rcp_f32", "v_rsq_f32", "v_sqrt_f32", "v_sin_f32", "v_cos_f32")

def parse_regs(tok):
    t = tok.strip()
    t = t.replace("-", "", 1) if t.startswith("-") and len(t) > 1 and t[1] in "vsa|" else t
    t = t.strip("|")
    m = re.fullmatch(r"abs\((.*)\)", t)
    if m:
        t = m.group(1)
    m = re.fullmatch(r"([vsa])(\d+)", t)
    if m:
        return [(m.group(1), int(m.group(2)))]
    m = re.fullmatch(r"([vsa])\[(\d+):(\d+)\]", t)
    if m:
        return [(m.group(1), i) for i in range(int(m.group(2)), int(m.group(3)) + 1)]
    if t == "vcc":
        return [("s", 106), ("s", 107)]
    if t == "vcc_lo":
        return [("s", 106)]
    if t == "vcc_hi":
        return [("s", 107)]
    if t == "exec":
        return [("s", 126), ("s", 127)]
    if t == "m0":
        return [("s", 124)]
    return []

class Ins:
    def __init__(self, text):
        self.text = text
        body = text.split(";")[0].strip()
        parts = body.split(None, 1)
        self.op = parts[0]
        rest = parts[1] if len(parts) > 1 else ""
        ops = [o.strip() for o in rest.split(",")] if rest else []
        self.mods = []
        if ops:
            last = ops[-1].split()
            if last:
                ops[-1] = last[0]
                self.mods = last[1:]
        self.ops = ops
        op = self.op
        self.is_mfma = op.startswith("v_mfma")
        self.is_valu = op.startswith("v_") and not self.is_mfma
        self.is_trans = any(op.startswith(t) for t in TRANS)
        self.is_vmem = op.startswith("buffer_") or op.startswith("global_")
        self.is_ds = op.startswith("ds_")
        self.is_salu = op.startswith("s_")
        self.is_lds_dma = self.is_vmem and "lds" in self.mods
        self.is_dpp = any(m.startswith("row_") or m.startswith("quad_perm") or m.startswith("wave_") for m in self.mods)
        R = [parse_regs(o) for o in ops]
        w, r = [], []
        self.mfma_c = []
        self.mfma_ab = []
        self.store_data = []
        if op in ("s_waitcnt", "s_barrier", "s_nop", "s_endpgm", "s_setprio", "s_sleep") or op.startswith("s_branch") or op.startswith("s_cbranch"):
            if op.startswith("s_cbranch_vcc"):
                r = [("s", 106), ("s", 107)]
        elif op.startswith("s_cmp"):
            for x in R: r += x
        elif self.is_mfma:
            w = R[0]; self.mfma_ab = R[1] + R[2]; self.mfma_c = R[3] if len(R) > 3 else []
            r = self.mfma_ab + self.mfma_c
        elif "store" in op or op.startswith("ds_write"):
            for x in R: r += x
            if op.startswith("buffer_store"):
                self.store_data = R[0]
            elif op.startswith("global_store"):
                self.store_data = R[1]
        elif self.is_lds_dma:
            for x in R: r += x
            r += [("s", 124)]
        elif op.startswith("v_permlane") and "swap" in op:
            w = R[0] + R[1]; r = R[0] + R[1]
        elif op.startswith("v_add_co") or op.startswith("v_sub_co") or op.startswith("v_addc_co") or op.startswith("v_subb_co") or op.startswith("v_div_scale"):
            w = R[0] + R[1]
            for x in R[2:]: r += x
        elif op.startswith("v_fmac") or op.startswith("v_dot2c") or op.startswith("v_pk_fmac"):
            w = R[0]
            for x in R: r += x
        elif op.startswith("s_and_saveexec") or op.startswith("s_or_saveexec"):
            w = R[0] + [("s", 126), ("s", 127)]
            for x in R[1:]: r += x
        elif op.startswith("buffer_atomic") or op.startswith("global_atomic"):
            for x in R: r += x
            if "sc0" in self.mods:
                w = R[0]
        else:
            w = R[0] if R else []
            for x in R[1:]: r += x
        self.w = set(w); self.r = set(r)
        self.wide_store = bool(self.store_data) and ("x3" in op or "x4" in op)
        if self.is_mfma:
            self.passes = 8 if "32x32x16" in op else (4 if "16x16x32" in op else None)
            assert self.passes, op
        self.states = 1
        if op == "s_nop":
            self.states = int(ops[0], 0) + 1

class Label:
    def __init__(self, name): self.name = name

class Raw:
    def __init__(self, text): self.text = text

MAXAGE = 24

class Kernel:
    def __init__(self, name):
        self.name = name
        self.items = []
    def I(self, text):
        for line in text.strip().split("\n"):
            line = line.strip()
            if not line or line.startswith(";"):
                continue
            if line.endswith(":"):
                self.items.append(Label(line[:-1]))
            else:
                self.items.append(Ins(line))
    def label(self, name):
        self.items.append(Label(name))
    def comment(self, t):
        self.items.append(Raw("; " + t))

    @staticmethod
    def need(state, ins):
        need = 0
        def req(kind, regs, n):
            nonlocal need
            for rg in regs:
                a = state.get((kind, rg))
                if a is not None and a < n:
                    need = max(need, n - a)
        touched = ins.r | ins.w
        if ins.is_mfma:
            req("valu_w", ins.r, 2)
            for p, (ab, cov) in ((8, (12, 10)), (4, (8, 6))):
                req("mfma_d%d" % p, ins.mfma_ab, ab)
            for p, cov in ((8, 10), (4, 6)):
                for rg in ins.mfma_c:
                    key = ("mfma_d%d" % p, rg)
                    a = state.get(key)
                    if a is not None and a < cov:
                        dset = state.get(("mfma_dset", rg))
                        if not (dset == frozenset(ins.mfma_c) and p == ins.passes):
                            need = max(need, cov - a)
            for p, cov in ((8, 10), (4, 6)):
                for rg in ins.w:
                    if rg in ins.mfma_c: continue
                    a = state.get(("mfma_d%d" % p, rg))
                    if a is not None and a < cov:
                        need = max(need, cov - a)
        else:
            if ins.is_valu or ins.is_vmem or ins.is_ds:
                req("mfma_d8", touched, 12)
                req("mfma_d4", touched, 8)
                req("mfma_c8", ins.w, 7)
                req("mfma_c4", ins.w, 3)
            if ins.is_valu:
                if not ins.is_trans:
                    req("trans_w", ins.r, 1)
                sregs = [x for x in ins.r if x[0] == "s"]
                req("valu_sw", sregs, 2)
                if ins.op.startswith("v_readlane") or ins.op.startswith("v_readfirstlane"):
                    req("valu_w", [x for x in ins.r if x[0] == "v"], 1)
                    req("valu_sw", sregs, 4)
                if ins.op.startswith("v_permlane"):
                    req("valu_w", ins.r, 2)
                if ins.is_dpp:
                    req("valu_w", ins.r, 2)
                req("store_data", ins.w, 2)
            else:
                req("store_data", ins.w, 1)
            if ins.is_vmem:
                req("valu_sw", [x for x in ins.r if x[0] == "s"], 5)
            if ins.is_lds_dma:
                req("salu_m0", [("s", 124)], 1)
        return need

    @staticmethod
    def advance(state, n):
        out = {}
        for k, a in state.items():
            if k[0] == "mfma_dset":
                out[k] = a
                continue
            if a + n < MAXAGE:
                out[k] = a + n
        return out

    @staticmethod
    def apply(state, ins):
        st = Kernel.advance(state, ins.states)
        if ins.is_mfma:
            p = ins.passes
            for rg in ins.w:
                st[("mfma_d%d" % p, rg)] = 0
                st[("mfma_dset", rg)] = frozenset(ins.w)
            for rg in ins.mfma_c:
                st[("mfma_c%d" % p, rg)] = 0
        elif ins.is_valu:
            for rg in ins.w:
                if rg[0] == "s":
                    st[("valu_sw", rg)] = 0
                else:
                    st[("valu_w", rg)] = 0
                    if ins.is_trans:
                        st[("trans_w", rg)] = 0
                    else:
                        st.pop(("trans_w", rg), None)
        elif ins.is_salu:
            if ("s", 124) in ins.w:
                st[("salu_m0", ("s", 124))] = 0
        if ins.wide_store:
            for rg in ins.store_data:
                st[("store_data", rg)] = 0
        return st

    @staticmethod
    def merge(a, b):
        if a is None: return dict(b)
        out = dict(a)
        for k, v in b.items():
            if k[0] == "mfma_dset":
                if k in out and out[k] != v:
                    out[k] = frozenset()
                elif k not in out:
                    out[k] = frozenset()
                continue
            if k not in out or v < out[k]:
                out[k] = v
        for k in list(out):
            if k[0] == "mfma_dset" and k not in b:
                out[k] = frozenset()
        return out

    def finalize(self):
        label_in = {}
        for it in range(12):
            new_in = {}
            out = []
            state = {}
            reachable = True
            for x in self.items:
                if isinstance(x, Label):
                    inc = label_in.get(x.name)
                    if reachable:
                        state = Kernel.merge(inc, state) if inc is not None else state
                    else:
                        state = dict(inc) if inc is not None else {}
                    reachable = True
                    out.append(x)
                    continue
                if isinstance(x, Raw):
                    out.append(x); continue
                n = Kernel.need(state, x)
                while n > 0:
                    k = min(n, 16)
                    nop = Ins("s_nop %d" % (k - 1))
                    out.append(nop)
                    state = Kernel.apply(state, nop)
                    n -= k
                out.append(x)
                state = Kernel.apply(state, x)
                if x.op.startswith("s_branch") or x.op.startswith("s_cbranch"):
                    tgt = x.ops[0]
                    new_in[tgt] = Kernel.merge(new_in.get(tgt), state)
                    if x.op == "s_branch":
                        reachable = False
                if x.op == "s_endpgm":
                    reachable = False
            changed = False
            for k, v in new_in.items():
                m = Kernel.merge(label_in.get(k), v) if k in label_in else v
                if m != label_in.get(k):
                    label_in[k] = m; changed = True
            if not changed:
                break
        else:
            raise RuntimeError("hazard fixpoint did not converge")
        self.out = out
        return out

    def text(self):
        self.finalize()
        lines = []
        for x in self.out:
            if isinstance(x, Label):
                lines.append(x.name + ":")
            elif isinstance(x, Raw):
                lines.append("    " + x.text)
            else:
                lines.append("    " + x.text)
        return "\n".join(lines)

    def max_vgpr(self):
        m = -1
        for x in self.items:
            if isinstance(x, Ins):
                for rg in x.r | x.w:
                    if rg[0] == "v": m = max(m, rg[1])
        return m
    def max_sgpr(self):
        m = -1
        for x in self.items:
            if isinstance(x, Ins):
                for rg in x.r | x.w:
                    if rg[0] == "s" and rg[1] < 102: m = max(m, rg[1])
        return m

def vr(a, n=1):
    return "v%d" % a if n == 1 else "v[%d:%d]" % (a, a + n - 1)
def sr(a, n=1):
    return "s%d" % a if n == 1 else "s[%d:%d]" % (a, a + n - 1)

class Alloc:
    def __init__(self, start=0, limit=256):
        self.n = start; self.limit = limit
    def get(self, n=1, align=1):
        if n >= 2: align = max(align, 2)
        if n >= 4: align = max(align, 4)
        self.n = (self.n + align - 1) // align * align
        a = self.n
        self.n += n
        assert self.n <= self.limit, "out of registers"
        return a
```

```python
import sys, importlib
sys.path.insert(0, "gen")
from common import *
HEADER = open("recurrent_scan__compressed_kv_cla__dense_activation_relu__prompt.s.ref").read().split("; Override launch")[0]

def emit(mods, path):
    ks = []
    for m in mods:
        mod = importlib.import_module(m)
        ks.append(mod.build())
    out = HEADER
    for k, launch in ks:
        out += "; @launch kernel=%s %s\n" % (k.name, launch)
    out += '.amdgcn_target "amdgcn-amd-amdhsa--gfx950"\n.text\n'
    for k, _ in ks:
        out += ".globl %s\n.p2align 8\n.type %s,@function\n%s:\n" % (k.name, k.name, k.name)
        out += k.text() + "\n"
    out += '.section .rodata,"a"\n'
    for k, _ in ks:
        out += ".p2align 6\n" + descriptor(k)
    open(path, "w").write(out)
    for k, _ in ks:
        print(k.name, "vgpr", k.max_vgpr() + 1, "sgpr", k.max_sgpr() + 1, "ins", sum(1 for x in k.out if isinstance(x, Ins)))

if __name__ == "__main__":
    mods = sys.argv[2:] if len(sys.argv) > 2 else ["k0_ln", "k1_proj"]
    emit(mods, sys.argv[1] if len(sys.argv) > 1 else "dev.s")
```

```python
from fw import *

KA_X, KA_CKV, KA_WQ, KA_WUK, KA_WUV, KA_WO, KA_BX, KA_W1, KA_W2, KA_OUT, KA_DBG, KA_WS = [8 * i for i in range(12)]

WS_XN = 0x0
WS_Q = 0x0200000
WS_K = 0x1200000
WS_VT = 0x2200000
WS_H = 0x3200000
H_LD = 1408
WS_CTX = 0x3800000
WS_PART = 0x4800000
WS_CKV = 0x5800000
SZ_XN = 2048 * 512 * 2
SZ_QKV = 32 * 2048 * 128 * 2
SZ_H = 2048 * H_LD * 2
SZ_CTX = 2048 * 4096 * 2
SZ_PART = 4 * 2048 * 512 * 4

def srd(k, dst, ptr, nbytes, off=0):
    if off:
        k.I("s_add_u32 s%d, s%d, 0x%x" % (dst, ptr, off))
        k.I("s_addc_u32 s%d, s%d, 0" % (dst + 1, ptr + 1))
        k.I("s_and_b32 s%d, s%d, 0xffff" % (dst + 1, dst + 1))
    else:
        k.I("s_mov_b32 s%d, s%d" % (dst, ptr))
        k.I("s_and_b32 s%d, s%d, 0xffff" % (dst + 1, ptr + 1))
    k.I("s_mov_b32 s%d, 0x%x" % (dst + 2, nbytes))
    k.I("s_mov_b32 s%d, 0x00020000" % (dst + 3))

def descriptor(k, lds_static=0, extra=""):
    nv = k.max_vgpr() + 1
    nv = max(nv, 8)
    acc = (nv + 3) // 4 * 4
    if getattr(k, 'agprs', 0):
        nv = acc + k.agprs
    ns = max(k.max_sgpr() + 1, 16)
    return (".amdhsa_kernel %s\n  .amdhsa_next_free_vgpr %d\n  .amdhsa_next_free_sgpr %d\n  .amdhsa_accum_offset %d\n"
            "  .amdhsa_group_segment_fixed_size 0\n  .amdhsa_kernarg_size 96\n  .amdhsa_user_sgpr_count 2\n"
            "  .amdhsa_user_sgpr_kernarg_segment_ptr 1\n  .amdhsa_system_sgpr_workgroup_id_x 1\n%s.end_amdhsa_kernel\n"
            % (k.name, nv, ns, acc, extra))

def stamp_begin(k, s0):
    k.I("s_memtime s[%d:%d]" % (s0, s0 + 1))
    k.I("s_memrealtime s[%d:%d]" % (s0 + 2, s0 + 3))

def stamp_end(k, s0, sdbg, vtmp):
    k.I("s_memtime s[%d:%d]" % (s0 + 4, s0 + 5))
    k.I("s_memrealtime s[%d:%d]" % (s0 + 6, s0 + 7))
    k.I("s_load_dwordx2 s[%d:%d], s[0:1], %d" % (sdbg, sdbg + 1, KA_DBG))
    k.I("s_waitcnt lgkmcnt(0)")
    k.I("s_sub_u32 s%d, s%d, s%d" % (s0 + 4, s0 + 4, s0))
    k.I("s_sub_u32 s%d, s%d, s%d" % (s0 + 6, s0 + 6, s0 + 2))
    srd(k, s0 + 8, sdbg, 256)
    k.I("v_mov_b32 v%d, s%d" % (vtmp, s0 + 4))
    k.I("v_mov_b32 v%d, s%d" % (vtmp + 1, s0 + 6))
    k.I("s_lshl_b32 s%d, s2, 3" % s0)
    k.I("v_mov_b32 v%d, s%d" % (vtmp + 2, s0))
    k.I("buffer_store_dwordx2 v[%d:%d], v%d, s[%d:%d], 0 offen" % (vtmp, vtmp + 1, vtmp + 2, s0 + 8, s0 + 11))

def stamp_mark(k, sreg):
    k.I("s_memtime s[%d:%d]" % (sreg, sreg + 1))

def stamp_dump(k, s0, marks, sdbg, ssrd, vtmp):
    k.I("s_load_dwordx2 s[%d:%d], s[0:1], %d" % (sdbg, sdbg + 1, KA_DBG))
    k.I("s_waitcnt lgkmcnt(0)")
    srd(k, ssrd, sdbg, 256)
    k.I("s_lshl_b32 s%d, s2, 5" % sdbg)
    k.I("v_mov_b32 v%d, s%d" % (vtmp + 1, sdbg))
    for i, m in enumerate(marks):
        k.I("s_sub_u32 s%d, s%d, s%d" % (m, m, s0))
        k.I("v_mov_b32 v%d, s%d" % (vtmp, m))
        k.I("buffer_store_dword v%d, v%d, s[%d:%d], 0 offen offset:%d" % (vtmp, vtmp + 1, ssrd, ssrd + 3, 4 * i))
```
